```python
import torch

def _softmax(x, axis=-1):
    return torch.softmax(x, dim=axis)
def _gelu(x):
    return torch.nn.functional.gelu(x, approximate="tanh")
def _silu(x):
    return torch.nn.functional.silu(x)
def _sigmoid(x):
    return torch.sigmoid(x)
def _layernorm(x, axis=-1, eps=1e-5):
    m = x.mean(dim=axis, keepdim=True)
    v = x.var(dim=axis, keepdim=True, unbiased=False)
    return (x - m) / torch.sqrt(v + eps)
def _scatter_add(tgt, idx, src, axis=0):
    return tgt.clone().index_add_(axis, idx, src)
def _segment_sum(src, seg, n):
    out = torch.zeros((n,) + src.shape[1:], dtype=src.dtype)
    return out.index_add_(0, seg, src)
def _pad(x, pw):
    flat = tuple(v for pair in reversed(pw) for v in pair)
    return torch.nn.functional.pad(x, flat)

kernel_name = 'gated_mix__sliding_block_cached__glu_gated_reglu__decode'

def setup_inputs():

    _w = (lambda a: (lambda t: t.to(torch.bfloat16) if t.is_floating_point() else t)(torch.as_tensor(a)))
    def _A_setup():
        B, Sq, D = 1, 1, 512
        Hq, Hkv, Sk, Dh = 32, 32, 8192, 128
        assert Hq % Hkv == 0, (Hq, Hkv)
        return {
            "x": _w((lambda *s: torch.randn(*s, dtype=torch.bfloat16) * 0.05)(B, Sq, D)),
            "k_cache": _w((lambda *s: torch.randn(*s, dtype=torch.bfloat16) * 6.4)(B, Hkv, Sk, Dh)),
            "v_cache": _w((lambda *s: torch.randn(*s, dtype=torch.bfloat16) * 0.05)(B, Hkv, Sk, Dh)),
            "wq": _w((lambda *s: torch.randn(*s, dtype=torch.bfloat16) * 6.4)(D, Hq * Dh) * (D ** -0.5)),
            "wo": _w((lambda *s: torch.randn(*s, dtype=torch.bfloat16) * 0.05)(Hq * Dh, D) * ((Hq * Dh) ** -0.5)),
        }
    _A_in = _A_setup()

    def _B_setup():
        B, S, D, F = 1, 1, 512, 1376
        return {
            "x": _w((lambda *s: torch.randn(*s, dtype=torch.bfloat16) * 0.05)(B, S, D)),
            "W_gate": _w((lambda *s: torch.randn(*s, dtype=torch.bfloat16) * 0.8)(D, F) * (2.0 / D) ** 0.5),
            "W_up": _w((lambda *s: torch.randn(*s, dtype=torch.bfloat16) * 0.8)(D, F) * (2.0 / D) ** 0.5),
            "W_down": _w((lambda *s: torch.randn(*s, dtype=torch.bfloat16) * 0.8)(F, D) * (1.0 / F) ** 0.5),
        }
    _B_in = _B_setup()

    return {
        "A_x": _A_in["x"],
        "A_k_cache": _A_in["k_cache"],
        "A_v_cache": _A_in["v_cache"],
        "A_wq": _A_in["wq"],
        "A_wo": _A_in["wo"],
        "B_x": _B_in["x"],
        "B_W_gate": _B_in["W_gate"],
        "B_W_up": _B_in["W_up"],
        "B_W_down": _B_in["W_down"],
        "gate_w": _w((lambda *s: torch.randn(*s, dtype=torch.bfloat16) * 0.1)(512) * 16.0),
    }

def reference(A_x, A_k_cache, A_v_cache, A_wq, A_wo, B_x, B_W_gate, B_W_up, B_W_down, gate_w):
    def _A_ref(x, k_cache, v_cache, wq, wo):
        B, Sq, D = x.shape
        Hq, Dh = 32, 128
        Hkv, Sk = k_cache.shape[1], k_cache.shape[2]
        W = min(4096, max(256, Sk // 4))
        rep = Hq // Hkv
        q = (lambda x, *d: x.permute(*d))((x @ wq).reshape(B, Sq, Hq, Dh), 0, 2, 1, 3)
        k = (lambda x, n, axis: torch.repeat_interleave(x, n, dim=axis))(k_cache[:, :, Sk - W:, :], rep, axis=1)
        v = (lambda x, n, axis: torch.repeat_interleave(x, n, dim=axis))(v_cache[:, :, Sk - W:, :], rep, axis=1)
        scores = torch.einsum("bhqd,bhkd->bhqk", q, k) * (Dh ** -0.5)
        p = _softmax(scores, axis=-1)
        o = torch.einsum("bhqk,bhkd->bhqd", p, v)
        return (lambda x, *d: x.permute(*d))(o, 0, 2, 1, 3).reshape(B, Sq, Hq * Dh) @ wo

    def _B_ref(x, W_gate, W_up, W_down):
        gate = torch.einsum("bsd,df->bsf", x, W_gate)
        up = torch.einsum("bsd,df->bsf", x, W_up)
        gate = gate * (lambda x, dt: x.to(dt))(gate > 0, gate.dtype)
        h = gate * up
        return torch.einsum("bsf,fd->bsd", h, W_down)

    x = A_x
    g = _sigmoid((x * gate_w).sum(-1, keepdims=True))
    a = _A_ref(x, A_k_cache, A_v_cache, A_wq, A_wo)
    b = _B_ref(x, B_W_gate, B_W_up, B_W_down)
    return g * a + (1 - g) * b
```

```python
KN = "gated_mix__sliding_block_cached__glu_gated_reglu__decode_kernel"
STAMP_OFF = 128 << 20

class Asm:
    def __init__(self):
        self.lines = []
    def __call__(self, s=""):
        for l in s.split("\n"):
            self.lines.append(l)
    def text(self):
        return "\n".join(self.lines) + "\n"

def header(grid, block, lds, nstamps=0, extra=""):
    s = "; @launch grid=(%d,1,1) block=(%d,1,1) lds=%d\n" % (grid, block, lds)
    if nstamps:
        s += "; nstamps=%d\n" % nstamps
    s += extra
    s += '.amdgcn_target "amdgcn-amd-amdhsa--gfx950"\n.text\n.globl %s\n.p2align 8\n.type %s,@function\n%s:\n' % (KN, KN, KN)
    return s

def footer(vgpr, sgpr=102, accum=None):
    if accum is None:
        accum = min(256, (vgpr + 3) // 4 * 4)
    return """.section .rodata,"a"
.p2align 6
.amdhsa_kernel %s
  .amdhsa_next_free_vgpr %d
  .amdhsa_next_free_sgpr %d
  .amdhsa_accum_offset %d
  .amdhsa_group_segment_fixed_size 0
  .amdhsa_kernarg_size 104
  .amdhsa_user_sgpr_count 2
  .amdhsa_user_sgpr_kernarg_segment_ptr 1
  .amdhsa_system_sgpr_workgroup_id_x 1
  .amdhsa_float_denorm_mode_32 3
.end_amdhsa_kernel
""" % (KN, vgpr, sgpr, accum)
```

```python
import re
TRANS = ("v_exp_f32", "v_log_f32", "v_rcp_f32", "v_rsq_f32", "v_sqrt_f32", "v_sin_f32", "v_cos_f32")

def regs_of(tok):
    tok = tok.strip()
    tok = tok.lstrip("-")
    if tok.startswith("abs(") or tok.startswith("|"):
        tok = tok.strip("|").replace("abs(", "").rstrip(")")
    m = re.fullmatch(r"([vsa])(\d+)", tok)
    if m: return [(m.group(1), int(m.group(2)))]
    m = re.fullmatch(r"([vsa])\[(\d+):(\d+)\]", tok)
    if m: return [(m.group(1), i) for i in range(int(m.group(2)), int(m.group(3)) + 1)]
    if tok == "vcc": return [("s", "vcc")]
    return []

def parse(line):
    l = line.split(";")[0].strip()
    if not l or l.endswith(":") or l.startswith("."): return None
    p = l.split(None, 1)
    op = p[0]
    ops = []
    mods = ""
    if len(p) > 1:
        parts = re.split(r",(?![^\[]*\])", p[1])
        for k, x in enumerate(parts):
            x = x.strip()
            if k == len(parts) - 1:
                y = x.split(None, 1)
                ops.append(y[0]); mods = y[1] if len(y) > 1 else ""
            else:
                ops.append(x)
    R = [regs_of(o) for o in ops]
    dst, src = [], []
    kind = "other"
    if op.startswith("v_mfma"):
        kind = "mfma"; dst = R[0]; src = R[1] + R[2] + R[3]
        return dict(op=op, kind=kind, dst=dst, src=src, A=R[1] + R[2], C=R[3], mods=mods)
    if op.startswith("v_"):
        kind = "valu"
        if "permlane" in op:
            dst = R[0] + R[1]; src = R[0] + R[1]
        elif op.startswith("v_add_co") or op.startswith("v_addc_co") or op.startswith("v_sub_co"):
            dst = R[0] + R[1]; src = sum(R[2:], [])
        else:
            dst = R[0]; src = sum(R[1:], [])
            if op.startswith("v_dot2c") or op.startswith("v_fmac") or op.startswith("v_writelane"):
                src = src + R[0]
            if "_dpp" in op and ("bank_mask:0xf" not in mods or "row_mask:0xf" not in mods):
                src = src + R[0]
    elif op.startswith("global_load") or op.startswith("buffer_load") or op.startswith("ds_read"):
        kind = "mem"
        if "lds" in mods.split() or op.startswith("global_load_lds"):
            src = sum(R, [])
        else:
            dst = R[0]; src = sum(R[1:], [])
    elif op.startswith("global_store") or op.startswith("buffer_store") or op.startswith("ds_write") or op.startswith("ds_") or op.startswith("global_atomic"):
        kind = "mem"; src = sum(R, [])
    elif op.startswith("s_"):
        kind = "salu"
    return dict(op=op, kind=kind, dst=dst, src=src, mods=mods)

def passes(op):
    if "32x32" in op: return 8
    if "4x4" in op: return 2
    return 4

def fix(lines, verbose=False):
    out = []
    hist = []
    pos = 0
    added = 0
    for line in lines:
        ins = parse(line)
        if ins is None:
            out.append(line); continue
        need = 0
        def req(ppos, n):
            nonlocal need
            gap = pos - ppos - 1
            if n - gap > need: need = n - gap
        S = set(ins["src"]); D = set(ins["dst"])
        op = ins["op"]
        for ppos, p in hist[-24:]:
            PD = set(p["dst"])
            pv = {r for r in PD if r[0] in "va"}; ps = {r for r in PD if r[0] == "s"}
            if p["kind"] == "valu":
                isdot = p["op"].startswith("v_dot")
                if pv & S:
                    if "_dpp" in op: req(ppos, 2)
                    if "permlane" in op: req(ppos, 2)
                    if op.startswith("v_readlane") or op.startswith("v_readfirstlane"): req(ppos, 1)
                    if ins["kind"] == "mfma": req(ppos, 3 if isdot else 2)
                    if p["op"].startswith(TRANS) and ins["kind"] in ("valu", "mem", "mfma"): req(ppos, 1)
                if isdot and (pv & (S | D)):
                    same = op == p["op"]
                    only_c = same and op.startswith("v_dot2c") and not (pv & (set(ins["src"][:-len(ins["dst"])])))
                    if not only_c: req(ppos, 3)
                if ps & S:
                    if ins["kind"] == "valu": req(ppos, 4 if "lane" in op else 2)
                    if ins["kind"] == "mem": req(ppos, 5)
            elif p["kind"] == "mfma":
                n = passes(p["op"])
                big = {2: 5, 4: 8, 8: 12}[n]
                if ins["kind"] == "mfma":
                    if PD & set(ins["A"]): req(ppos, big)
                    if PD & set(ins["C"]):
                        if list(p["dst"]) == list(ins["C"]) and passes(op) == n: req(ppos, 2 if n == 2 else 0)
                        else: req(ppos, {2: 4, 4: 6, 8: 10}[n])
                    elif PD & D: req(ppos, big)
                elif ins["kind"] in ("valu", "mem"):
                    if PD & (S | D): req(ppos, big)
                    if ins["kind"] == "valu" and set(p["C"]) & D: req(ppos, {2: 1, 4: 3, 8: 7}[n])
            elif p["kind"] == "mem":
                if ("store_dwordx4" in p["op"] or "store_dwordx3" in p["op"]) and set(p["src"]) & D: req(ppos, 2)
        while need > 0:
            k = min(need, 16)
            out.append("s_nop %d" % (k - 1)); pos += k; need -= k; added += 1
        out.append(line)
        hist.append((pos, ins))
        if op == "s_nop":
            pos += int(line.split()[1]) + 1
        else:
            pos += 1
    return out
```

```python
import sys, os
sys.path.insert(0, os.path.dirname(os.path.abspath(__file__)))
from gen_common import *
import hazard

HDR = open(os.path.join(os.path.dirname(os.path.abspath(__file__)), "..", "cdna_kernels",
     "gated_mix__sliding_block_cached__glu_gated_reglu__decode.s.ref")).read().split("; Override launch")[0]

XAB = 0x1000
XC = XAB + 256 * 2048
RA = 0; RQ = 8192; RM = RQ + 512; RO = RM + 256; RY = RO + 4 * 1088
LDS_END = RY + 8192

def gen(fname, stamps=False, nt=True, hmap=0, lds_bytes=None, vgprs=None, b0=True, win=4, ppos=2, early_v=3, pad=True):
    a = Asm()
    V = {}
    nv = [1]
    def v(name, n=1, al=1):
        if name not in V:
            while nv[0] % al: nv[0] += 1
            V[name] = nv[0]; nv[0] += n
        return V[name]
    def r(name, k=0): return "v%d" % (V[name] + k)
    def rr(name, n, k=0): return "v[%d:%d]" % (V[name] + k, V[name] + k + n - 1)
    for nm in ("lane", "t0", "t1", "t2", "t3"): v(nm)
    for nm in ("aX", "aQ0", "aQ1", "aWO", "aWD", "aST", "aGA", "aGB", "aGC", "aSC", "tag"): v(nm)
    v("aF", 2, 2); v("aKV", 8); v("M", 4)
    for nm in ("lRA", "lRAr", "lRAz", "lQw", "lQr", "lH", "lMw", "lOw", "lOr", "lYw", "lYr"): v(nm)
    for nm in ("x", "gw", "z", "ML", "hh"): v(nm)
    v("s", 8, 2); v("q", 4, 4); v("P", 4, 4); v("D0", 4, 4); v("D1", 4, 4); v("A0", 4, 4); v("A1", 4, 4)
    v("WQ", 8, 4); v("FF", 8, 4); v("K", 32, 4); v("Vv", 32, 4)
    V["WO"] = V["WQ"]; V["WD"] = V["FF"]; V["AH"] = V["FF"] + 4
    NT = " nt" if nt else ""
    sX8, sI, sJ, sT, sH, sC0, sN1, sW, sTmp, sTmp2 = "s31", "s32", "s33", "s34", "s35", "s36", "s37", "s38", "s39", "s40"
    sNonce, sFF, sSel, sBound, sHi, sL2E, sScale, sLo0, sLo1, sOnes, sHM = "s30", "s41", "s42", "s43", "s44", "s45", "s46", "s47", "s48", "s49", "s50"
    sCC = "s[52:53]"
    vm = []
    def vmem(name, text): a(text); vm.append(name)
    def wait(name): a("s_waitcnt vmcnt(%d)" % (len(vm) - 1 - vm.index(name)))
    nst = [0]
    def stamp():
        if stamps:
            a("s_memrealtime s[%d:%d]" % (60 + 2 * nst[0], 61 + 2 * nst[0])); nst[0] += 1
    DPPF = " row_mask:0xf bank_mask:0xf"
    def swapadd(kind, x, t):
        a("v_mov_b32 %s, %s" % (t, x))
        a("v_permlane%d_swap_b32 %s, %s" % (kind, x, t))
        a("v_add_f32 %s, %s, %s" % (x, x, t))
    def check(base):
        a("v_perm_b32 %s, %s, %s, %s" % (r("t0"), r(base, 1), r(base, 0), sSel))
        a("v_perm_b32 %s, %s, %s, %s" % (r("t1"), r(base, 3), r(base, 2), sSel))
        a("v_lshl_or_b32 %s, %s, 16, %s" % (r("t0"), r("t1"), r("t0")))
        a("v_cmp_ne_u32 vcc, %s, %s" % (sNonce, r("t0")))
    def exec_lo(): a("s_mov_b32 exec_hi, 0")
    def exec_all(): a("s_mov_b64 exec, -1")

    stamp()
    a("s_load_dwordx16 s[4:19], s[0:1], 0")
    a("s_load_dwordx8 s[20:27], s[0:1], 64")
    a("s_load_dwordx2 s[28:29], s[0:1], 96")
    a("s_cmpk_ge_u32 s2, 256")
    a("s_cbranch_scc1 L_end")
    a("s_and_b32 %s, s2, 7" % sX8)
    a("s_lshr_b32 %s, s2, 3" % sI)
    a("s_lshr_b32 %s, s2, 5" % sJ)
    a("s_and_b32 %s, %s, 3" % (sTmp, sI))
    a("s_lshl2_add_u32 %s, %s, %s" % (sT, sX8, sTmp))
    if hmap == 0:
        a("s_mov_b32 %s, %s" % (sH, sT))
    else:
        a("s_lshl3_add_u32 %s, %s, %s" % (sH, sTmp, sX8))
    a("v_and_b32 %s, 63, v0" % r("lane"))
    a("v_lshrrev_b32 %s, 4, v0" % r("t0"))
    a("v_and_b32 %s, 15, v0" % r("t1"))
    a("v_and_b32 %s, 7, v0" % r("t2"))
    a("v_lshrrev_b32 %s, 6, v0" % r("t3"))
    a("s_lshl_b32 %s, %s, 7" % (sTmp, sJ))
    a("v_lshl_add_u32 %s, %s, 2, %s" % (r("aX"), r("t0"), sTmp))
    a("v_readfirstlane_b32 %s, %s" % (sW, r("t3")))
    a("s_lshl_b32 %s, %s, 19" % (sTmp2, sJ))
    a("s_lshl_b32 s51, %s, 8" % sH)
    a("s_add_u32 %s, %s, s51" % (sTmp2, sTmp2))
    a("v_lshlrev_b32 %s, 4, %s" % (r("lQr"), r("t1")))
    a("v_lshl_add_u32 %s, %s, 14, %s" % (r("aQ0"), r("t0"), r("lQr")))
    a("v_add_u32 %s, %s, %s" % (r("aQ0"), sTmp2, r("aQ0")))
    a("v_add_u32 %s, 0x2000, %s" % (r("aQ1"), r("aQ0")))
    a("s_min_u32 %s, %s, 12" % (sTmp2, sT))
    a("s_mul_i32 %s, %s, 5" % (sC0, sT))
    a("s_add_u32 %s, %s, %s" % (sC0, sC0, sTmp2))
    a("s_cmp_lt_u32 %s, 12" % sT)
    a("s_cselect_b32 %s, 5, 4" % sN1)
    a("v_min_u32 %s, %s, %s" % (r("P", 0), sN1, r("t2")))
    a("s_mul_i32 %s, %s, %d" % (sTmp2, sJ, 64 * 2752 // 16))
    a("s_add_u32 %s, %s, %s" % (sTmp2, sTmp2, sC0))
    a("v_add_lshl_u32 %s, %s, %s, 4" % (r("P", 0), r("P", 0), sTmp2))
    a("v_mul_u32_u24 %s, 5504, %s" % (r("P", 1), r("t0")))
    a("v_add_u32 %s, %s, %s" % (r("P", 0), r("P", 0), r("P", 1)))
    a("v_cmp_lt_u32 vcc, 7, %s" % r("t1"))
    a("v_lshlrev_b32 %s, 3, %s" % (r("lMw"), r("t0")))
    a("s_lshl_b32 %s, %s, 21" % (sTmp2, sH))
    a("s_lshl_b32 s51, %s, 16" % sJ)
    a("s_add_u32 %s, %s, s51" % (sTmp2, sTmp2))
    a("s_and_b32 s51, %s, 7" % sI)
    a("s_lshl_b32 s51, s51, 10")
    a("s_add_u32 %s, %s, s51" % (sTmp2, sTmp2))
    a("s_add_u32 %s, %s, 0x180000" % (sTmp2, sTmp2))
    a("v_lshlrev_b32 %s, 4, %s" % (r("t0"), r("lane")))
    a("v_lshl_add_u32 %s, %s, 10, %s" % (r("lRA"), r("t3"), r("t0")))
    a("v_lshl_add_u32 %s, %s, 13, %s" % (r("aKV", 0), r("t3"), r("t0")))
    a("v_add_u32 %s, %s, %s" % (r("aKV", 0), sTmp2, r("aKV", 0)))
    for k in range(1, 8):
        a("v_xor_b32 %s, 0x%x, %s" % (r("aKV", k), k << 10, r("aKV", 0)))
    a("s_waitcnt lgkmcnt(0)")
    stamp()
    vmem("LX", "global_load_dword %s, %s, s[4:5]" % (r("x"), r("aX")))
    vmem("LG", "global_load_dword %s, %s, s[22:23]" % (r("gw"), r("aX")))
    vmem("Q0", "global_load_dwordx4 %s, %s, s[10:11]%s" % (rr("WQ", 4), r("aQ0"), NT))
    vmem("Q1", "global_load_dwordx4 %s, %s, s[10:11]%s" % (rr("WQ", 4, 4), r("aQ1"), NT))
    a("s_load_dword %s, s[28:29], 0" % sNonce)
    a("v_mov_b32 %s, s16" % r("aF", 0)); a("v_mov_b32 %s, s17" % r("aF", 1))
    a("v_mov_b32 %s, s18" % r("P", 1)); a("v_mov_b32 %s, s19" % r("P", 2))
    a("v_cndmask_b32 %s, %s, %s, vcc" % (r("aF", 0), r("aF", 0), r("P", 1)))
    a("v_cndmask_b32 %s, %s, %s, vcc" % (r("aF", 1), r("aF", 1), r("P", 2)))
    a("v_add_co_u32 %s, vcc, %s, %s" % (r("aF", 0), r("aF", 0), r("P", 0)))
    a("v_addc_co_u32 %s, vcc, 0, %s, vcc" % (r("aF", 1), r("aF", 1)))
    vmem("F0", "global_load_dwordx4 %s, %s, off%s" % (rr("FF", 4), rr("aF", 2), NT))
    vmem("F1", "global_load_dwordx4 %s, %s, off offset:2752%s" % (rr("FF", 4, 4), rr("aF", 2), NT))
    if b0: a("s_barrier")
    def ldK(k): vmem("K%d" % k, "global_load_dwordx4 %s, %s, s[6:7]%s" % (rr("K", 4, 4 * k), r("aKV", k), NT))
    def ldV(k): vmem("V%d" % k, "global_load_dwordx4 %s, %s, s[8:9]%s" % (rr("Vv", 4, 4 * k), r("aKV", k), NT))
    for k in range(win): ldK(k)
    a("s_movk_i32 %s, 0xff" % sFF)
    a("s_mov_b32 %s, 0x0c0c0400" % sSel)
    a("s_mov_b32 %s, 400000" % sBound)
    a("s_mov_b32 %s, 0xffff0000" % sHi)
    a("s_mov_b32 %s, 0x3fb8aa3b" % sL2E)
    a("s_mov_b32 %s, 0x3db504f3" % sScale)
    a("s_mov_b32 %s, 0x01000100" % sLo0)
    a("s_mov_b32 %s, 0x03020302" % sLo1)
    a("s_mov_b32 %s, 0x3f803f80" % sOnes)
    a("s_mov_b32 s52, 0xcccccccc"); a("s_mov_b32 s53, s52")
    a("s_cmp_le_u32 %s, %s" % (sW, sN1))
    a("s_cselect_b32 %s, -1, 0" % sHM)
    a("v_lshlrev_b32 %s, 4, v0" % r("t0"))
    a("v_mov_b32 %s, 0xffff" % r("t1"))
    a("v_lshlrev_b32 %s, %s, %s" % (r("t0"), r("t0"), r("t1")))
    a("v_lshrrev_b32 %s, 1, %s" % (r("t1"), r("t2")))
    for k in range(4):
        a("v_cmp_eq_u32 vcc, %d, %s" % (k, r("t1")))
        a("v_mov_b32 %s, 0" % r("s", 2 * k)); a("v_mov_b32 %s, 0" % r("s", 2 * k + 1))
        a("v_cndmask_b32 %s, 0, %s, vcc" % (r("M", k), r("t0")))
    a("v_lshlrev_b32 %s, 4, %s" % (r("t0"), r("t2")))
    a("v_lshrrev_b32 %s, 3, v0" % r("t1"))
    a("s_lshl_b32 %s, %s, 17" % (sTmp2, sH))
    a("s_add_u32 %s, %s, %s" % (sTmp2, sTmp2, sTmp))
    a("v_lshl_add_u32 %s, %s, 11, %s" % (r("aWO"), r("t1"), r("t0")))
    a("v_add_u32 %s, %s, %s" % (r("aWO"), sTmp2, r("aWO")))
    a("s_lshl3_add_u32 s51, %s, 7" % sN1)
    a("s_lshl_b32 %s, %s, 13" % (sTmp2, sC0))
    a("s_add_u32 %s, %s, %s" % (sTmp2, sTmp2, sTmp))
    a("v_min_u32 %s, s51, %s" % (r("aWD"), r("t1")))
    a("v_lshl_add_u32 %s, %s, 10, %s" % (r("aWD"), r("aWD"), r("t0")))
    a("v_add_u32 %s, %s, %s" % (r("aWD"), sTmp2, r("aWD")))
    a("v_lshlrev_b32 %s, 1, %s" % (r("lH"), r("t1")))
    a("s_lshl_b32 s51, %s, 7" % sT)
    a("s_add_u32 s51, s51, %s" % sW)
    a("s_lshl_b32 s51, s51, 7")
    a("s_add_u32 s51, s51, 0x%x" % XAB)
    a("v_and_b32 %s, 7, %s" % (r("t1"), r("t1")))
    a("v_lshl_add_u32 %s, %s, 11, %s" % (r("aGA"), r("t1"), r("t0")))
    a("v_add_u32 %s, s51, %s" % (r("aGA"), r("aGA")))
    a("v_lshlrev_b32 %s, 4, %s" % (r("aGB"), r("t1")))
    a("v_lshl_add_u32 %s, %s, 11, %s" % (r("aGB"), r("t2"), r("aGB")))
    a("v_add_u32 %s, s51, %s" % (r("aGB"), r("aGB")))
    a("s_lshl_b32 %s, %s, 11" % (sTmp2, sJ))
    a("s_add_u32 s51, s51, %s" % sTmp2)
    a("v_and_b32 %s, 31, v0" % r("t1"))
    a("v_lshl_add_u32 %s, %s, 2, s51" % (r("aST"), r("t1")))
    a("s_lshl_b32 s51, %s, 5" % sJ)
    a("s_add_u32 s51, s51, %s" % sT)
    a("s_lshl2_add_u32 s51, s51, %s" % sW)
    a("s_lshl_b32 s51, s51, 7")
    a("s_add_u32 s51, s51, 0x%x" % XC)
    a("v_lshl_add_u32 %s, %s, 2, s51" % (r("aSC"), r("t1")))
    a("s_lshl_b32 s51, %s, 10" % sX8)
    a("s_add_u32 s51, s51, %s" % sI)
    a("s_lshl_b32 s51, s51, 4")
    a("s_add_u32 s51, s51, 0x%x" % XC)
    a("v_lshrrev_b32 %s, 5, %s" % (r("t3"), r("lane")))
    a("v_lshl_add_u32 %s, %s, 9, s51" % (r("aGC"), r("t1")))
    a("v_lshl_add_u32 %s, %s, 8, %s" % (r("aGC"), r("t3"), r("aGC")))
    a("s_lshl_b32 s51, %s, 7" % sW)
    a("v_lshl_add_u32 %s, %s, 2, s51" % (r("lRAr"), r("t1")))
    a("v_lshl_add_u32 %s, %s, 12, %s" % (r("lRAr"), r("t3"), r("lRAr")))
    a("s_lshr_b32 s51, %s, 1" % sW)
    a("s_and_b32 %s, %s, 1" % (sTmp2, sW))
    a("s_lshl_b32 s54, s51, 5")
    a("s_add_u32 s54, s54, %s" % sTmp2)
    a("s_lshl_b32 s54, s54, 7")
    a("v_lshl_add_u32 %s, %s, 2, s54" % (r("lYr"), r("t1")))
    a("v_lshl_add_u32 %s, %s, 11, %s" % (r("lYr"), r("t3"), r("lYr")))
    a("s_mul_i32 s54, s51, 1088")
    a("s_lshl_b32 s55, %s, 9" % sTmp2)
    a("s_add_u32 s54, s54, s55")
    a("v_and_b32 %s, 16, v0" % r("lOw"))
    a("v_lshl_add_u32 %s, %s, 1, %s" % (r("lYw"), r("t0"), r("lOw")))
    a("v_lshl_add_u32 %s, %s, 1, %s" % (r("lOw"), r("lQr"), r("lOw")))
    a("v_add_u32 %s, s54, %s" % (r("lOw"), r("lOw")))
    a("s_lshl_b32 s54, %s, 9" % sW)
    a("v_lshl_add_u32 %s, %s, 8, %s" % (r("lYw"), r("t3"), r("lYw")))
    a("v_add_u32 %s, s54, %s" % (r("lYw"), r("lYw")))
    a("v_bfe_u32 %s, v0, 1, 1" % r("lOr"))
    a("v_lshl_add_u32 %s, %s, 1, %s" % (r("lOr"), r("t3"), r("lOr")))
    a("v_mul_u32_u24 %s, 1088, %s" % (r("lOr"), r("lOr")))
    a("v_and_b32 %s, 28, v0" % r("t1"))
    a("v_lshl_add_u32 %s, %s, 1, %s" % (r("lOr"), r("t1"), r("lOr")))
    a("v_and_b32 %s, 1, v0" % r("t1"))
    a("s_lshl_b32 s54, %s, 6" % sW)
    a("v_lshl_add_u32 %s, %s, 2, s54" % (r("t1"), r("t1")))
    a("v_add_u32 %s, %s, %s" % (r("lOr"), r("t1"), r("lOr")))
    a("s_lshr_b32 s54, %s, 2" % sW)
    a("s_lshl1_add_u32 s54, s54, %s" % sTmp2)
    a("s_lshl_b32 s54, s54, 4")
    a("s_and_b32 s55, s51, 1")
    a("s_add_u32 s54, s54, s55")
    a("s_lshl_b32 s54, s54, 3")
    a("v_lshrrev_b32 %s, 4, %s" % (r("t1"), r("lane")))
    a("v_lshl_add_u32 %s, %s, 1, %s" % (r("lQw"), r("t1"), r("t0")))
    a("v_add_u32 %s, s54, %s" % (r("lQw"), r("lQw")))
    a("s_lshl_b32 s54, %s, 10" % sW)
    a("v_mov_b32 %s, s54" % r("lRAz"))
    wait("LG")
    a("v_perm_b32 %s, %s, %s, %s" % (r("t0"), r("x"), r("x"), sLo0))
    a("v_perm_b32 %s, %s, %s, %s" % (r("t1"), r("x"), r("x"), sLo1))
    a("v_and_b32 %s, 0xffff, %s" % (r("t2"), r("x")))
    a("v_and_b32 %s, %s, %s" % (r("t3"), sHi, r("x")))
    a("v_dot2_f32_bf16 %s, %s, %s, 0" % (r("t2"), r("t2"), r("gw")))
    a("v_dot2_f32_bf16 %s, %s, %s, 0" % (r("t3"), r("t3"), r("gw")))
    for k in range(4): a("v_and_b32 %s, %s, %s" % (r("A0", k), r("t0"), r("M", k)))
    a("v_cvt_pk_bf16_f32 %s, %s, %s" % (r("t2"), r("t2"), r("t3")))
    a("v_dot2_f32_bf16 %s, %s, %s, 0" % (r("z"), r("t2"), sOnes))
    for k in range(4): a("v_and_b32 %s, %s, %s" % (r("A1", k), r("t1"), r("M", k)))
    swapadd(16, r("z"), r("t0")); swapadd(32, r("z"), r("t0"))
    a("s_waitcnt lgkmcnt(0)")
    a("s_add_u32 %s, %s, 0x01010101" % (sNonce, sNonce))
    a("v_lshlrev_b32 %s, 3, v0" % r("t0"))
    a("v_lshrrev_b32 %s, %s, %s" % (r("tag"), r("t0"), sNonce))
    MF = "v_mfma_f32_16x16x32_bf16"
    wait("Q0"); a("%s %s, %s, %s, 0" % (MF, rr("D0", 4), rr("A0", 4), rr("WQ", 4)))
    wait("Q1"); a("%s %s, %s, %s, %s" % (MF, rr("D0", 4), rr("A1", 4), rr("WQ", 4, 4), rr("D0", 4)))
    wait("F0"); a("%s %s, %s, %s, 0" % (MF, rr("D1", 4), rr("A0", 4), rr("FF", 4)))
    wait("F1"); a("%s %s, %s, %s, %s" % (MF, rr("D1", 4), rr("A1", 4), rr("FF", 4, 4), rr("D1", 4)))
    stamp()
    exec_lo()
    a("ds_write_b128 %s, %s offset:%d" % (r("lRA"), rr("D0", 4), RA))
    a("s_not_b64 exec, exec")
    a("ds_write_b128 %s, %s offset:%d" % (r("lRA"), rr("D1", 4), RA))
    a("ds_write_b32 %s, %s offset:%d" % (r("lRAz"), r("z"), RA + 39 * 16))
    exec_all()
    a("s_waitcnt lgkmcnt(0)")
    a("s_barrier")
    a("ds_read2st64_b32 %s, %s offset0:%d offset1:%d" % (rr("D0", 2), r("lRAr"), RA // 256, RA // 256 + 4))
    a("ds_read2st64_b32 %s, %s offset0:%d offset1:%d" % (rr("D0", 2, 2), r("lRAr"), RA // 256 + 8, RA // 256 + 12))
    a("s_waitcnt lgkmcnt(0)")
    a("v_add_f32 %s, %s, %s" % (r("D0", 0), r("D0", 0), r("D0", 1)))
    a("v_add_f32 %s, %s, %s" % (r("D0", 2), r("D0", 2), r("D0", 3)))
    a("v_add_f32 %s, %s, %s" % (r("D0", 0), r("D0", 0), r("D0", 2)))
    swapadd(32, r("D0", 0), r("t0"))
    a("v_bfi_b32 %s, %s, %s, %s" % (r("D0", 0), sFF, r("tag"), r("D0", 0)))
    exec_lo()
    vmem("SA", "global_store_dword %s, %s, s[28:29] sc1" % (r("aST"), r("D0", 0)))
    exec_all()
    stamp()
    seq = [("K", k) for k in range(win, 8)] + [("V", k) for k in range(8)]
    allq = ["K%d" % k for k in range(8)] + ["V%d" % k for k in range(8)]
    def nxt(throttle=True):
        c, k = seq.pop(0)
        if throttle: wait(allq[allq.index("%s%d" % (c, k)) - win])
        (ldK if c == "K" else ldV)(k)
    for _ in range(ppos + 1): nxt()
    PL = "global_load_dwordx4 %s, %s, s[28:29] sc1" % (rr("P", 4), r("aGA"))
    vmem("PA", PL)
    for _ in range(win): nxt()
    wait("PA")
    for _ in range(early_v):
        if seq: nxt(False)
    a("L_chkA:")
    check("P")
    a("s_cbranch_vccz L_okA")
    a("s_sub_u32 %s, %s, 1" % (sBound, sBound))
    a("s_cbranch_scc1 L_end")
    a(PL)
    a("s_waitcnt vmcnt(0)")
    a("s_branch L_chkA")
    a("L_okA:")
    stamp()
    a("v_permlane32_swap_b32 %s, %s" % (r("P", 0), r("P", 2)))
    a("v_permlane32_swap_b32 %s, %s" % (r("P", 1), r("P", 3)))
    a("v_add_f32 %s, %s, %s" % (r("P", 0), r("P", 0), r("P", 2)))
    a("v_add_f32 %s, %s, %s" % (r("P", 1), r("P", 1), r("P", 3)))
    a("v_permlane16_swap_b32 %s, %s" % (r("P", 0), r("P", 1)))
    a("v_add_f32 %s, %s, %s" % (r("P", 0), r("P", 0), r("P", 1)))
    a("v_add_f32_dpp %s, %s, %s row_ror:8%s" % (r("P", 0), r("P", 0), r("P", 0), DPPF))
    a("v_cvt_pk_bf16_f32 %s, %s, %s" % (r("P", 0), r("P", 0), r("P", 0)))
    a("ds_write_b16 %s, %s offset:%d" % (r("lQw"), r("P", 0), RQ))
    a("v_mov_b32 %s, 0" % r("t3"))
    a("s_waitcnt lgkmcnt(0)")
    a("s_barrier")
    a("ds_read_b128 %s, %s offset:%d" % (rr("q", 4), r("lQr"), RQ))
    a("ds_read_u16 %s, %s offset:%d" % (r("t0"), r("lH"), RQ + 256))
    a("ds_read_u16 %s, %s offset:%d" % (r("t1"), r("lH"), RQ + 384))
    a("ds_read_u16 %s, %s offset:%d" % (r("z"), r("t3"), RQ + 256 + 112))
    wait("K7")
    a("s_waitcnt lgkmcnt(0)")
    for d in range(4):
        for k in range(8):
            a("v_dot2c_f32_bf16 %s, %s, %s" % (r("s", k), r("K", 4 * k + d), r("q", d)))
    a("v_lshlrev_b32 %s, 16, %s" % (r("t0"), r("t0")))
    a("v_lshlrev_b32 %s, 16, %s" % (r("t1"), r("t1")))
    a("v_max_f32 %s, 0, %s" % (r("t0"), r("t0")))
    for k in range(4): a("v_add_f32_dpp %s, %s, %s row_ror:8 row_mask:0xf bank_mask:0x3" % (r("s", k), r("s", k), r("s", k)))
    for k in range(4): a("v_add_f32_dpp %s, %s, %s row_ror:8 row_mask:0xf bank_mask:0xc" % (r("s", k), r("s", k + 4), r("s", k + 4)))
    a("v_mul_f32 %s, %s, %s" % (r("t0"), r("t0"), r("t1")))
    for k in range(2): a("v_add_f32_dpp %s, %s, %s row_half_mirror row_mask:0xf bank_mask:0x5" % (r("s", k), r("s", k), r("s", k)))
    a("v_cvt_pk_bf16_f32 %s, %s, %s" % (r("t0"), r("t0"), r("t0")))
    for k in range(2): a("v_add_f32_dpp %s, %s, %s row_half_mirror row_mask:0xf bank_mask:0xa" % (r("s", k), r("s", k + 2), r("s", k + 2)))
    a("v_and_b32 %s, %s, %s" % (r("t0"), sHM, r("t0")))
    for k in range(2): a("v_add_f32_dpp %s, %s, %s quad_perm:[1,0,3,2]%s" % (r("s", k), r("s", k), r("s", k), DPPF))
    a("v_and_b32 %s, %s, %s" % (r("AH", 0), r("t0"), r("M", 0)))
    for k in range(2): a("v_add_f32_dpp %s, %s, %s quad_perm:[2,3,0,1]%s" % (r("s", k), r("s", k), r("s", k), DPPF))
    for k in range(1, 4): a("v_and_b32 %s, %s, %s" % (r("AH", k), r("t0"), r("M", k)))
    if seq: nxt(False)
    def round2(x, y, t):
        a("v_cvt_pk_bf16_f32 %s, %s, %s" % (t, x, y))
        a("v_lshlrev_b32 %s, 16, %s" % (x, t))
        a("v_and_b32 %s, %s, %s" % (y, sHi, t))
    s0, s1, m_, l_ = r("s", 0), r("s", 1), r("s", 2), r("s", 3)
    round2(s0, s1, r("t0"))
    a("v_mul_f32 %s, %s, %s" % (s0, sScale, s0)); a("v_mul_f32 %s, %s, %s" % (s1, sScale, s1))
    round2(s0, s1, r("t0"))
    a("v_max_f32 %s, %s, %s" % (m_, s0, s1))
    a("v_max_f32_dpp %s, %s, %s row_ror:4%s" % (m_, m_, m_, DPPF))
    a("v_max_f32_dpp %s, %s, %s row_ror:8%s" % (m_, m_, m_, DPPF))
    a("v_sub_f32 %s, %s, %s" % (s0, s0, m_)); a("v_sub_f32 %s, %s, %s" % (s1, s1, m_))
    a("v_mul_f32 %s, %s, %s" % (s0, sL2E, s0)); a("v_mul_f32 %s, %s, %s" % (s1, sL2E, s1))
    a("v_exp_f32 %s, %s" % (s0, s0)); a("v_exp_f32 %s, %s" % (s1, s1))
    a("v_add_f32 %s, %s, %s" % (l_, s0, s1))
    a("v_add_f32_dpp %s, %s, %s row_ror:4%s" % (l_, l_, l_, DPPF))
    a("v_add_f32_dpp %s, %s, %s row_ror:8%s" % (l_, l_, l_, DPPF))
    a("ds_write_b64 %s, %s offset:%d" % (r("lMw"), rr("s", 2, 2), RM))
    while seq: nxt(False)
    a("s_waitcnt lgkmcnt(0)")
    a("s_barrier")
    a("ds_read_b128 %s, %s offset:%d" % (rr("P", 4), r("lQr"), RM))
    vmem("WD", "global_load_dwordx4 %s, %s, s[20:21]%s" % (rr("WD", 4), r("aWD"), NT))
    vmem("O0", "global_load_dwordx4 %s, %s, s[12:13]%s" % (rr("WO", 4), r("aWO"), NT))
    vmem("O1", "global_load_dwordx4 %s, %s, s[12:13] offset:1024%s" % (rr("WO", 4, 4), r("aWO"), NT))
    stamp()
    a("s_waitcnt lgkmcnt(0)")
    Mx = r("t0")
    a("v_max_f32 %s, %s, %s" % (Mx, r("P", 0), r("P", 2)))
    for d in ("quad_perm:[1,0,3,2]", "quad_perm:[2,3,0,1]", "row_ror:4", "row_ror:8"):
        a("v_max_f32_dpp %s, %s, %s %s%s" % (Mx, Mx, Mx, d, DPPF))
    for x in (r("P", 0), r("P", 2), m_): a("v_sub_f32 %s, %s, %s" % (x, x, Mx))
    for x in (r("P", 0), r("P", 2), m_): a("v_mul_f32 %s, %s, %s" % (x, sL2E, x))
    for x in (r("P", 0), r("P", 2), m_): a("v_exp_f32 %s, %s" % (x, x))
    a("v_mul_f32 %s, %s, %s" % (r("t1"), r("P", 0), r("P", 1)))
    a("v_fmac_f32 %s, %s, %s" % (r("t1"), r("P", 2), r("P", 3)))
    a("v_mul_f32 %s, %s, %s" % (s0, s0, m_)); a("v_mul_f32 %s, %s, %s" % (s1, s1, m_))
    a("v_add_f32_dpp %s, %s, %s quad_perm:[1,0,3,2]%s" % (r("t1"), r("t1"), r("t1"), DPPF))
    a("v_cvt_pk_bf16_f32 %s, %s, %s" % (s0, s0, s0)); a("v_cvt_pk_bf16_f32 %s, %s, %s" % (s1, s1, s1))
    a("v_add_f32_dpp %s, %s, %s quad_perm:[2,3,0,1]%s" % (r("t1"), r("t1"), r("t1"), DPPF))
    a("v_and_b32 %s, 1, v0" % r("t2"))
    a("v_cmp_eq_u32 vcc, 1, %s" % r("t2"))
    extra = ["v_add_f32_dpp %s, %s, %s row_ror:4%s" % (r("t1"), r("t1"), r("t1"), DPPF),
             "v_add_f32_dpp %s, %s, %s row_ror:8%s" % (r("t1"), r("t1"), r("t1"), DPPF),
             "v_cndmask_b32 %s, %s, %s, vcc" % (r("ML"), Mx, r("t1"))]
    for k in range(8):
        if extra: a(extra.pop(0))
        for d in range(4):
            a("v_and_b32_dpp %s, %s, %s row_newbcast:%d%s" % (r("K", 4 * k + d), r("s", k & 1), r("M", d), 4 * (k >> 1), DPPF))
    for k in range(8):
        wait("V%d" % k)
        a("%s %s, %s, %s, %s" % (MF, rr("D0", 4), rr("K", 4, 4 * k), rr("Vv", 4, 4 * k), rr("D0", 4) if k else "0"))
    stamp()
    exec_lo()
    a("ds_write_b128 %s, %s offset:%d" % (r("lOw"), rr("D0", 4), RO))
    exec_all()
    a("s_waitcnt lgkmcnt(0)")
    a("s_barrier")
    a("ds_read2st64_b32 %s, %s offset0:%d offset1:%d" % (rr("D0", 2), r("lOr"), RO // 256, RO // 256 + 2))
    assert RO % 256 == 0
    a("s_waitcnt lgkmcnt(0)")
    a("v_add_f32 %s, %s, %s" % (r("D0", 0), r("D0", 0), r("D0", 1)))
    a("v_add_f32_dpp %s, %s, %s quad_perm:[2,3,0,1]%s" % (r("D0", 0), r("D0", 0), r("D0", 0), DPPF))
    swapadd(32, r("D0", 0), r("t0"))
    a("v_cndmask_b32 %s, %s, %s, %s" % (r("D0", 0), r("D0", 0), r("ML"), sCC))
    a("v_bfi_b32 %s, %s, %s, %s" % (r("D0", 0), sFF, r("tag"), r("D0", 0)))
    exec_lo()
    vmem("SB", "global_store_dword %s, %s, s[28:29] offset:1024 sc1" % (r("aST"), r("D0", 0)))
    exec_all()
    stamp()
    wait("WD")
    a("%s %s, %s, %s, 0" % (MF, rr("D1", 4), rr("AH", 4), rr("WD", 4)))
    a("s_mov_b32 s54, 0x00ff00ff"); a("s_not_b32 s55, s54")
    a("s_mov_b64 exec, s[54:55]")
    a("ds_write_b128 %s, %s offset:%d" % (r("lYw"), rr("D1", 4), RY + 4096))
    exec_all()
    a("L_pollB:")
    a("s_sub_u32 %s, %s, 1" % (sBound, sBound))
    a("s_cbranch_scc1 L_end")
    a("global_load_dwordx4 %s, %s, s[28:29] offset:1024 sc1" % (rr("P", 4), r("aGB")))
    a("s_waitcnt vmcnt(0)")
    check("P")
    a("s_cbranch_vccnz L_pollB")
    stamp()
    a("v_and_b32 %s, %s, %s" % (r("P", 2), sHi, r("P", 2)))
    X8 = ("quad_perm:[1,0,3,2]", "quad_perm:[2,3,0,1]", "row_half_mirror")
    a("v_max_f32_dpp %s, %s, %s %s%s" % (Mx, r("P", 2), r("P", 2), X8[0], DPPF))
    for d in X8[1:]: a("v_max_f32_dpp %s, %s, %s %s%s" % (Mx, Mx, Mx, d, DPPF))
    a("v_sub_f32 %s, %s, %s" % (Mx, r("P", 2), Mx))
    a("v_mul_f32 %s, %s, %s" % (Mx, sL2E, Mx))
    a("v_exp_f32 %s, %s" % (Mx, Mx))
    for k in (3, 0, 1): a("v_mul_f32 %s, %s, %s" % (r("P", k), Mx, r("P", k)))
    for d in X8:
        for k in (3, 0, 1): a("v_add_f32_dpp %s, %s, %s %s%s" % (r("P", k), r("P", k), r("P", k), d, DPPF))
    a("v_rcp_f32 %s, %s" % (r("P", 3), r("P", 3)))
    for k in (0, 1): a("v_mul_f32 %s, %s, %s" % (r("P", k), r("P", 3), r("P", k)))
    for k in (0, 1): a("v_cvt_pk_bf16_f32 %s, %s, %s" % (r("P", k), r("P", k), r("P", k)))
    for k in range(4): a("v_and_b32 %s, %s, %s" % (r("A0", k), r("P", 0), r("M", k)))
    for k in range(4): a("v_and_b32 %s, %s, %s" % (r("A1", k), r("P", 1), r("M", k)))
    a("%s %s, %s, %s, 0" % (MF, rr("D0", 4), rr("A0", 4), rr("WO", 4)))
    a("%s %s, %s, %s, %s" % (MF, rr("D0", 4), rr("A1", 4), rr("WO", 4, 4), rr("D0", 4)))
    a("s_mov_b64 exec, s[54:55]")
    a("ds_write_b128 %s, %s offset:%d" % (r("lYw"), rr("D0", 4), RY))
    exec_all()
    a("s_waitcnt lgkmcnt(0)")
    a("s_barrier")
    stamp()
    a("s_cmp_ge_u32 %s, 4" % sW)
    a("s_cbranch_scc1 L_cons")
    assert RY % 256 == 0
    for k in range(4):
        a("ds_read2st64_b32 %s, %s offset0:%d offset1:%d" % (rr("s", 2, 2 * k), r("lYr"), RY // 256 + 2 * k, RY // 256 + 2 * k + 1))
    for k in range(4):
        a("s_waitcnt lgkmcnt(%d)" % (0 if stamps else 3 - k))
        a("v_add_f32 %s, %s, %s" % (r("s", 2 * k), r("s", 2 * k), r("s", 2 * k + 1)))
        if k & 1: a("v_add_f32 %s, %s, %s" % (r("s", 2 * k - 2), r("s", 2 * k - 2), r("s", 2 * k)))
    a("v_add_f32 %s, %s, %s" % (s0, s0, r("s", 4)))
    swapadd(32, s0, r("t0"))
    a("v_bfi_b32 %s, %s, %s, %s" % (s0, sFF, r("tag"), s0))
    exec_lo()
    a("global_store_dword %s, %s, s[28:29] sc1" % (r("aSC"), s0))
    a("s_branch L_end" if stamps else "s_endpgm")
    a("L_cons:")
    a("s_cmp_lg_u32 %s, 4" % sW)
    a("s_cbranch_scc1 L_end")
    a("s_cmp_ge_u32 %s, 16" % sI)
    a("s_cbranch_scc1 L_end")
    a("v_lshlrev_b32 %s, 16, %s" % (r("z"), r("z")))
    a("v_mul_f32 %s, %s, %s" % (r("z"), sL2E, r("z")))
    a("v_exp_f32 %s, -%s" % (r("z"), r("z")))
    a("v_add_f32 %s, 1.0, %s" % (r("z"), r("z")))
    a("v_rcp_f32 %s, %s" % (r("z"), r("z")))
    a("v_cvt_pk_bf16_f32 %s, %s, %s" % (r("z"), r("z"), r("z")))
    a("v_and_b32 %s, %s, %s" % (r("z"), sHi, r("z")))
    a("s_mov_b32 exec_lo, 0")
    a("v_sub_f32 %s, 1.0, %s" % (r("z"), r("z")))
    a("v_cvt_pk_bf16_f32 %s, %s, %s" % (r("z"), r("z"), r("z")))
    a("v_and_b32 %s, %s, %s" % (r("z"), sHi, r("z")))
    exec_all()
    a("s_lshl_b32 s51, %s, 4" % sX8)
    a("s_add_u32 s51, s51, %s" % sI)
    a("s_lshl_b32 s51, s51, 3")
    a("v_lshrrev_b32 %s, 2, %s" % (r("t3"), r("lane")))
    a("v_add_u32 %s, s51, %s" % (r("t3"), r("t3")))
    a("L_pollC:")
    a("s_sub_u32 %s, %s, 1" % (sBound, sBound))
    a("s_cbranch_scc1 L_end")
    a("global_load_dwordx4 %s, %s, s[28:29] sc1" % (rr("P", 4), r("aGC")))
    a("s_waitcnt vmcnt(0)")
    check("P")
    a("s_cbranch_vccnz L_pollC")
    a("v_permlane16_swap_b32 %s, %s" % (r("P", 0), r("P", 2)))
    a("v_permlane16_swap_b32 %s, %s" % (r("P", 1), r("P", 3)))
    a("v_add_f32 %s, %s, %s" % (r("P", 0), r("P", 0), r("P", 2)))
    a("v_add_f32 %s, %s, %s" % (r("P", 1), r("P", 1), r("P", 3)))
    for d in ("quad_perm:[1,0,3,2]", "quad_perm:[2,3,0,1]", "row_ror:4", "row_ror:8"):
        for k in (0, 1): a("v_add_f32_dpp %s, %s, %s %s%s" % (r("P", k), r("P", k), r("P", k), d, DPPF))
    round2(r("P", 0), r("P", 1), r("t0"))
    for k in (0, 1): a("v_mul_f32 %s, %s, %s" % (r("P", k), r("z"), r("P", k)))
    round2(r("P", 0), r("P", 1), r("t0"))
    a("v_permlane32_swap_b32 %s, %s" % (r("P", 0), r("P", 1)))
    a("v_add_f32 %s, %s, %s" % (r("P", 0), r("P", 0), r("P", 1)))
    a("v_mov_b32 %s, %s" % (r("P", 1), r("P", 0)))
    a("v_permlane32_swap_b32 %s, %s" % (r("P", 0), r("P", 1)))
    a("v_cvt_pk_bf16_f32 %s, %s, %s" % (r("P", 0), r("P", 0), r("P", 1)))
    a("s_mov_b32 exec_lo, 0x10001"); a("s_mov_b32 exec_hi, 0")
    a("global_store_dword %s, %s, s[24:25] sc1" % (r("t3"), r("P", 0)))
    a("s_cmp_lg_u32 s2, 0")
    a("s_cbranch_scc1 L_end")
    a("s_mov_b32 exec_lo, 1")
    a("v_mov_b32 %s, %s" % (r("P", 1), sNonce))
    a("v_mov_b32 %s, 0" % r("P", 2))
    a("global_store_dword %s, %s, s[28:29] sc1" % (r("P", 2), r("P", 1)))
    a("L_end:")
    if stamps:
        a("s_cmpk_ge_u32 s2, 256")
        a("s_cbranch_scc1 L_fin")
        a("s_waitcnt vmcnt(0)")
        stamp()
        a("s_mov_b64 exec, 1")
        a("s_waitcnt lgkmcnt(0)")
        a("s_lshl3_add_u32 s51, s2, %s" % sW)
        a("s_lshl_b32 s51, s51, 6")
        a("s_add_u32 s51, s51, 0x%x" % STAMP_OFF)
        a("v_mov_b32 v1, s51")
        for i in range(nst[0]):
            a("v_mov_b32 v2, s%d" % (60 + 2 * i))
            a("global_store_dword v1, v2, s[28:29] offset:%d" % (4 * i))
        a("L_fin:")
    a("s_endpgm")
    body = hazard.fix(a.lines)
    lds = lds_bytes or LDS_END
    head = HDR + "; @launch grid=(256,1,1) block=(512,1,1) lds=%d\n" % lds
    if stamps: head += "; nstamps=%d\n" % nst[0]
    head += '.amdgcn_target "amdgcn-amd-amdhsa--gfx950"\n.text\n'
    if pad: head += ".p2align 12\n.fill 832, 4, 0xbf800000\n"
    head += ".globl %s\n.p2align 8\n.type %s,@function\n%s:\n" % (KN, KN, KN)
    nvg = vgprs or nv[0]
    txt = head + "\n".join(("    " + l if not l.endswith(":") else l) for l in body) + "\n" + footer(nvg, 102 if stamps else 64)
    open(fname, "w").write(txt)
    return nv[0]

if __name__ == "__main__":
    print("vgprs", gen("work/k1.s"))
    gen("work/k1_st.s", stamps=True)
```
